```python
import torch

def _softmax(x, axis=-1):
    return torch.softmax(x, dim=axis)

def _gelu(x):
    return torch.nn.functional.gelu(x, approximate='tanh')

def _silu(x):
    return torch.nn.functional.silu(x)

def _sigmoid(x):
    return torch.sigmoid(x)

def _layernorm(x, axis=-1, eps=1e-05):
    m = x.mean(dim=axis, keepdim=True)
    v = x.var(dim=axis, keepdim=True, unbiased=False)
    return (x - m) / torch.sqrt(v + eps)

def _scatter_add(tgt, idx, src, axis=0):
    return tgt.clone().index_add_(axis, idx, src)

def _segment_sum(src, seg, n):
    out = torch.zeros((n,) + src.shape[1:], dtype=src.dtype)
    return out.index_add_(0, seg, src)

def _pad(x, pw):
    flat = tuple((v for pair in reversed(pw) for v in pair))
    return torch.nn.functional.pad(x, flat)
kernel_name = 'interleave_layers__linear_kernel_hedgehog__mixer_gmlp__prompt'

def setup_inputs():

    _w = lambda a: (lambda t: t.to(torch.bfloat16) if t.is_floating_point() else t)(torch.as_tensor(a))

    def _A_setup():
        B, S, D, H = (1, 2048, 640, 32)
        Dh = D // H
        return {'x': _w((lambda *s: torch.randn(*s, dtype=torch.bfloat16) * 0.05)(B, S, D)), 'wqkv': _w((lambda *s: torch.randn(*s, dtype=torch.bfloat16) * 0.4)(D, 3 * D)), 'w_phi': _w((lambda *s: torch.randn(*s, dtype=torch.bfloat16) * 0.4)(H, Dh, Dh) * Dh ** (-0.5)), 'wo': _w((lambda *s: torch.randn(*s, dtype=torch.bfloat16) * 0.05)(D, D))}
    _A_in = _A_setup()

    def _B_setup():
        B, S, D, F = (1, 2048, 640, 1536)
        Fh = F // 2
        return {'x': _w((lambda *s: torch.randn(*s, dtype=torch.bfloat16) * 0.05)(B, S, D)), 'w_in': _w((lambda *s: torch.randn(*s, dtype=torch.bfloat16) * 0.4)(D, 2 * Fh)), 'w_sp': _w(0.01 * (lambda *s: torch.randn(*s, dtype=torch.bfloat16) * 0.4)(S, S)), 'b_sp': _w(1.0 + 0.01 * (lambda *s: torch.randn(*s, dtype=torch.bfloat16) * 0.05)(S)), 'w_out': _w((lambda *s: torch.randn(*s, dtype=torch.bfloat16) * 0.05)(Fh, D))}
    _B_in = _B_setup()
    return {'A_x': _A_in['x'], 'A_wqkv': _A_in['wqkv'], 'A_w_phi': _A_in['w_phi'], 'A_wo': _A_in['wo'], 'B_x': _B_in['x'], 'B_w_in': _B_in['w_in'], 'B_w_sp': _B_in['w_sp'], 'B_b_sp': _B_in['b_sp'], 'B_w_out': _B_in['w_out']}

def reference(A_x, A_wqkv, A_w_phi, A_wo, B_x, B_w_in, B_w_sp, B_b_sp, B_w_out):

    def _A_ref(x, wqkv, w_phi, wo):
        B, S, D = x.shape
        H = 32
        Dh = D // H
        qkv = (lambda x, *d: x.permute(*d))((x @ wqkv).reshape(B, S, 3, H, Dh), 2, 0, 3, 1, 4)
        q, k, v = (qkv[0], qkv[1], qkv[2])
        pq = torch.einsum('bhsd,hdf->bhsf', q, w_phi)
        pk = torch.einsum('bhsd,hdf->bhsf', k, w_phi)
        phi_q = torch.concatenate([_softmax(pq, axis=-1), _softmax(-pq, axis=-1)], axis=-1)
        phi_k = torch.concatenate([_softmax(pk, axis=-1), _softmax(-pk, axis=-1)], axis=-1)
        kv = torch.einsum('bhsf,bhsd->bhfd', phi_k, v)
        z = torch.einsum('bhsf->bhf', phi_k)
        num = torch.einsum('bhqf,bhfd->bhqd', phi_q, kv)
        den = torch.einsum('bhqf,bhf->bhq', phi_q, z)[..., None] + 1e-06
        o = num / den
        return (lambda x, *d: x.permute(*d))(o, 0, 2, 1, 3).reshape(B, S, D) @ wo

    def _B_ref(x, w_in, w_sp, b_sp, w_out):
        B, S, D = x.shape
        F = w_in.shape[-1]
        Fh = F // 2
        z = _gelu(torch.einsum('bsd,df->bsf', x, w_in))
        z1 = z[..., :Fh].clone()
        z2 = _layernorm(z[..., Fh:], axis=-1)
        g = torch.einsum('ts,bsf->btf', w_sp, z2) + b_sp[None, :, None]
        return torch.einsum('bsf,fd->bsd', z1 * g, w_out)
    x = A_x
    x = x + _A_ref(_layernorm(x, axis=-1), A_wqkv, A_w_phi, A_wo)
    x = x + _B_ref(_layernorm(x, axis=-1), B_w_in, B_w_sp, B_b_sp, B_w_out)
    x = x + _A_ref(_layernorm(x, axis=-1), A_wqkv, A_w_phi, A_wo)
    x = x + _B_ref(_layernorm(x, axis=-1), B_w_in, B_w_sp, B_b_sp, B_w_out)
    return x
```

```python
KARG = {
    'A_x': 0, 'A_wqkv': 8, 'A_w_phi': 16, 'A_wo': 24, 'B_x': 32, 'B_w_in': 40,
    'B_w_sp': 48, 'B_b_sp': 56, 'B_w_out': 64, 'out': 72, 'debug': 80, 'ws': 88,
}

class Buf:
    def __init__(self, slot, off, size):
        self.slot, self.off, self.size = slot, off, size

class Kern:
    def __init__(self, name):
        self.name = name
        self.L = []
        self.nlabel = 0
    def __call__(self, s):
        import re
        m = re.search(r"offset:(\d+)", s)
        if m and s.lstrip().startswith("buffer_"):
            assert int(m.group(1)) <= 4095, f"MUBUF offset too large: {s}"
        if m and s.lstrip().startswith("ds_"):
            assert int(m.group(1)) <= 65535, f"DS offset too large: {s}"
        self.L.append("    " + s)
    def lab(self, s):
        self.L.append(s + ":")
    def newlabel(self, stem="L"):
        self.nlabel += 1
        return f"{stem}_{self.name}_{self.nlabel}"
    def c(self, s):
        self.L.append("    ; " + s)
    def text(self):
        return "\n".join(self.L)

def magic_div(d, maxn=1 << 20):
    m = (1 << 32) // d + 1
    for n in range(0, maxn, 1):
        if n >= 70000:
            break
        assert (n * m) >> 32 == n // d, (n, d)
    return m

def emit_srd(k, sreg, sptr, buf):
    if buf.off:
        k(f"s_add_u32 s{sreg}, s{sptr}, {buf.off}")
        k(f"s_addc_u32 s{sreg+1}, s{sptr+1}, 0")
    else:
        k(f"s_mov_b32 s{sreg}, s{sptr}")
        k(f"s_mov_b32 s{sreg+1}, s{sptr+1}")
    k(f"s_mov_b32 s{sreg+2}, {buf.size}")
    k(f"s_mov_b32 s{sreg+3}, 0x00020000")

def kernel_wrap(k, vgprs, sgprs, lds_static=0):
    name = k.name
    acc = (vgprs + 3) // 4 * 4
    head = f""".globl {name}
.p2align 8
.type {name},@function
{name}:
"""
    desc = f""".section .rodata,"a"
.p2align 6
.amdhsa_kernel {name}
  .amdhsa_next_free_vgpr {vgprs}
  .amdhsa_next_free_sgpr {sgprs}
  .amdhsa_accum_offset {acc}
  .amdhsa_group_segment_fixed_size 0
  .amdhsa_kernarg_size 96
  .amdhsa_user_sgpr_count 2
  .amdhsa_user_sgpr_kernarg_segment_ptr 1
  .amdhsa_system_sgpr_workgroup_id_x 1
.end_amdhsa_kernel
.text
"""
    return head + k.text() + "\n" + desc
```

```python
from asmlib import *
from lnk import hex_f32

LOG2E = 1.4426950408889634
NEG_INF = "0xff800000"

def load_wphiT_frags(k, vA, SRD_PHI, sHead, vLane, tmps):
    t0, t1, t2, t3 = tmps[:4]
    raw = tmps[4:20]
    k(f"v_and_b32 v{t0}, 31, v{vLane}")
    k(f"v_lshrrev_b32 v{t1}, 5, v{vLane}")
    k(f"v_mul_u32_u24 v{t2}, 320, v{t1}")
    k(f"v_lshl_add_u32 v{t2}, v{t0}, 1, v{t2}")
    k(f"s_mul_i32 s{sHead+1}, s{sHead}, 800")
    k(f"v_add_u32 v{t2}, s{sHead+1}, v{t2}")
    k(f"v_cmp_gt_u32 vcc, 20, v{t0}")
    k(f"v_mov_b32 v{t3}, 0x7ffffff0")
    k("s_nop 1")
    k(f"v_cndmask_b32 v{t2}, v{t3}, v{t2}, vcc")
    for j in range(8):
        k(f"buffer_load_ushort v{raw[j]}, v{t2}, s[{SRD_PHI}:{SRD_PHI+3}], 0 offen offset:{40*j}")
    k(f"v_cmp_eq_u32 vcc, 0, v{t1}")
    k("s_nop 1")
    k(f"v_cndmask_b32 v{t3}, v{t3}, v{t2}, vcc")
    for j in range(4):
        k(f"buffer_load_ushort v{raw[8+j]}, v{t3}, s[{SRD_PHI}:{SRD_PHI+3}], 0 offen offset:{40*(16+j)}")
    k("s_waitcnt vmcnt(0)")
    for j in range(4):
        k(f"v_lshl_or_b32 v{vA+j}, v{raw[2*j+1]}, 16, v{raw[2*j]}")
    k(f"v_lshl_or_b32 v{vA+4}, v{raw[9]}, 16, v{raw[8]}")
    k(f"v_lshl_or_b32 v{vA+5}, v{raw[11]}, 16, v{raw[10]}")
    k(f"v_mov_b32 v{vA+6}, 0")
    k(f"v_mov_b32 v{vA+7}, 0")

def load_qk_frags(k, vB, vOff, vOff2, SRD):
    k(f"buffer_load_dwordx4 v[{vB}:{vB+3}], v{vOff}, s[{SRD}:{SRD+3}], 0 offen")
    k(f"buffer_load_dwordx2 v[{vB+4}:{vB+5}], v{vOff2}, s[{SRD}:{SRD+3}], 0 offen")
    k(f"v_mov_b32 v{vB+6}, 0")
    k(f"v_mov_b32 v{vB+7}, 0")

def feature_softmax(k, vP, vPos, vNeg, vBias, T):
    t0, t1, t2, t3, t4, t5 = T[:6]
    for q in range(0, 12, 2):
        k(f"v_cvt_pk_bf16_f32 v{t0}, v{vP+q}, v{vP+q+1}")
        k(f"v_lshlrev_b32 v{vP+q}, 16, v{t0}")
        k(f"v_and_b32 v{vP+q+1}, 0xffff0000, v{t0}")
    for q in range(8, 12):
        k(f"v_add_f32 v{vPos+q}, v{vP+q}, v{vBias}")
        k(f"v_sub_f32 v{vNeg+q}, v{vBias}, v{vP+q}")
    k(f"v_max3_f32 v{t1}, v{vP}, v{vP+1}, v{vP+2}")
    k(f"v_max3_f32 v{t1}, v{t1}, v{vP+3}, v{vP+4}")
    k(f"v_max3_f32 v{t1}, v{t1}, v{vP+5}, v{vP+6}")
    k(f"v_max3_f32 v{t1}, v{t1}, v{vP+7}, v{vPos+8}")
    k(f"v_max3_f32 v{t1}, v{t1}, v{vPos+9}, v{vPos+10}")
    k(f"v_max_f32 v{t1}, v{t1}, v{vPos+11}")
    k(f"v_min3_f32 v{t2}, v{vP}, v{vP+1}, v{vP+2}")
    k(f"v_min3_f32 v{t2}, v{t2}, v{vP+3}, v{vP+4}")
    k(f"v_min3_f32 v{t2}, v{t2}, v{vP+5}, v{vP+6}")
    k(f"v_min_f32 v{t2}, v{t2}, v{vP+7}")
    k(f"v_sub_f32 v{t2}, 0, v{t2}")
    k(f"v_max3_f32 v{t2}, v{t2}, v{vNeg+8}, v{vNeg+9}")
    k(f"v_max3_f32 v{t2}, v{t2}, v{vNeg+10}, v{vNeg+11}")
    k(f"v_mov_b32 v{t3}, v{t1}")
    k(f"v_mov_b32 v{t4}, v{t2}")
    k("s_nop 1")
    k(f"v_permlane32_swap_b32 v{t1}, v{t3}")
    k(f"v_permlane32_swap_b32 v{t2}, v{t4}")
    k(f"v_max_f32 v{t1}, v{t1}, v{t3}")
    k(f"v_max_f32 v{t2}, v{t2}, v{t4}")
    k(f"v_mul_f32 v{t1}, {hex_f32(-LOG2E)}, v{t1}")
    k(f"v_mul_f32 v{t2}, {hex_f32(-LOG2E)}, v{t2}")
    k(f"v_mov_b32 v{t5}, {hex_f32(LOG2E)}")
    for q in range(12):
        srcp = vP + q if q < 8 else vPos + q
        k(f"v_fma_f32 v{vPos+q}, v{srcp}, v{t5}, v{t1}")
        if q < 8:
            k(f"v_fma_f32 v{vNeg+q}, -v{vP+q}, v{t5}, v{t2}")
        else:
            k(f"v_fma_f32 v{vNeg+q}, v{vNeg+q}, v{t5}, v{t2}")
    for q in range(12):
        k(f"v_exp_f32 v{vPos+q}, v{vPos+q}")
        k(f"v_exp_f32 v{vNeg+q}, v{vNeg+q}")
    k("s_nop 0")
    k(f"v_add_f32 v{t1}, v{vPos}, v{vPos+1}")
    k(f"v_add_f32 v{t2}, v{vNeg}, v{vNeg+1}")
    for q in range(2, 12):
        k(f"v_add_f32 v{t1}, v{t1}, v{vPos+q}")
        k(f"v_add_f32 v{t2}, v{t2}, v{vNeg+q}")
    k(f"v_mov_b32 v{t3}, v{t1}")
    k(f"v_mov_b32 v{t4}, v{t2}")
    k("s_nop 1")
    k(f"v_permlane32_swap_b32 v{t1}, v{t3}")
    k(f"v_permlane32_swap_b32 v{t2}, v{t4}")
    k(f"v_add_f32 v{t1}, v{t1}, v{t3}")
    k(f"v_add_f32 v{t2}, v{t2}, v{t4}")
    k(f"v_rcp_f32 v{t1}, v{t1}")
    k(f"v_rcp_f32 v{t2}, v{t2}")
    k("s_nop 0")
    for q in range(12):
        k(f"v_mul_f32 v{vPos+q}, v{vPos+q}, v{t1}")
        k(f"v_mul_f32 v{vNeg+q}, v{vNeg+q}, v{t2}")

def gen_kv(name, QKV, PHI, KVP, dbg=None):
    ldq = 3840
    k = Kern(name)
    end = k.newlabel("Lend")
    NWG = 256
    k(f"s_cmp_ge_u32 s2, {NWG}")
    k(f"s_cbranch_scc1 {end}")
    k(f"s_load_dwordx2 s[4:5], s[0:1], {KARG[QKV.slot]}")
    k(f"s_load_dwordx2 s[6:7], s[0:1], {KARG[PHI.slot]}")
    k(f"s_load_dwordx2 s[24:25], s[0:1], {KARG[KVP.slot]}")
    sHead, sChunk = 26, 28
    k(f"s_lshr_b32 s{sHead}, s2, 3")
    k(f"s_and_b32 s{sChunk}, s2, 7")
    k("s_waitcnt lgkmcnt(0)")
    emit_srd(k, 8, 4, QKV)
    emit_srd(k, 12, 6, PHI)
    emit_srd(k, 16, 24, KVP)
    vLane, vWave = 1, 2
    k("v_and_b32 v1, 63, v0")
    k("v_lshrrev_b32 v2, 6, v0")
    vA = 8
    vB = 16
    vP = 24
    vPos = 40
    vNeg = 52
    vKV = 64
    vV = 88
    vFa = 96
    vFb = 108
    T = list(range(116, 132))
    vOffK, vOffK2, vOffV, vOffV2 = 132, 133, 134, 135
    vLdsPhiW, vLdsPhiW2, vLdsVW, vLdsRa, vLdsRb, vBias = 136, 137, 138, 139, 140, 141
    load_wphiT_frags(k, vA, 12, sHead, vLane, [3, 4, 5, 6] + T)
    k("v_and_b32 v3, 31, v1")
    k("v_lshrrev_b32 v4, 5, v1")
    k(f"s_lshl_b32 s29, s{sChunk}, 8")
    k("v_lshl_add_u32 v5, v2, 6, v3")
    k("v_add_u32 v5, s29, v5")
    k(f"v_mul_u32_u24 v5, {ldq}, v5")
    k(f"s_mul_i32 s30, s{sHead}, 40")
    k("v_lshl_add_u32 v6, v4, 4, v5")
    k("v_add_u32 v6, s30, v6")
    k(f"v_add_u32 v{vOffK}, 1280, v6")
    k(f"v_add_u32 v{vOffK2}, 32, v{vOffK}")
    k("v_mov_b32 v7, 0x7ffffff0")
    k("v_cmp_eq_u32 vcc, 0, v4")
    k("s_nop 1")
    k(f"v_cndmask_b32 v{vOffK2}, v7, v{vOffK2}, vcc")
    k(f"v_add_u32 v{vOffV}, 2560, v6")
    k(f"v_add_u32 v{vOffV2}, 32, v{vOffV}")
    k(f"v_cndmask_b32 v{vOffV2}, v7, v{vOffV2}, vcc")
    k(f"v_mov_b32 v{vBias}, {NEG_INF}")
    k(f"v_cndmask_b32 v{vBias}, v{vBias}, 0, vcc")
    k("v_lshlrev_b32 v5, 13, v2")
    k("v_lshl_add_u32 v6, v3, 7, v5")
    k(f"v_lshl_add_u32 v{vLdsPhiW}, v4, 3, v6")
    k(f"v_add_u32 v{vLdsPhiW2}, 32, v{vLdsPhiW}")
    k("v_add_u32 v7, 80, v6")
    k(f"v_cndmask_b32 v{vLdsPhiW2}, v7, v{vLdsPhiW2}, vcc")
    k("v_lshl_add_u32 v6, v3, 6, v5")
    k("v_add_u32 v6, 4096, v6")
    k(f"v_lshl_add_u32 v{vLdsVW}, v4, 4, v6")
    k("v_lshrrev_b32 v3, 4, v1")
    k("v_and_b32 v4, 15, v1")
    k("v_lshrrev_b32 v6, 2, v4")
    k("v_lshl_add_u32 v3, v3, 3, v6")
    k("v_and_b32 v4, 3, v4")
    k("v_lshl_add_u32 v6, v3, 7, v5")
    k(f"v_lshl_add_u32 v{vLdsRa}, v4, 3, v6")
    k("v_lshl_add_u32 v6, v3, 6, v5")
    k("v_add_u32 v6, 4096, v6")
    k(f"v_lshl_add_u32 v{vLdsRb}, v4, 3, v6")
    pad = T[0:6]
    k(f"v_mov_b32 v{pad[0]}, 0x00003f80")
    for q in range(1, 6):
        k(f"v_mov_b32 v{pad[q]}, 0")
    k("v_lshrrev_b32 v4, 5, v1")
    k("v_cmp_eq_u32 vcc, 1, v4")
    k("s_and_saveexec_b64 s[32:33], vcc")
    k(f"ds_write_b64 v{vLdsVW}, v[{pad[0]}:{pad[1]}] offset:24")
    k(f"ds_write_b128 v{vLdsVW}, v[{pad[2]}:{pad[5]}] offset:32")
    k("s_mov_b64 exec, s[32:33]")
    for r in range(vKV, vKV + 24):
        k(f"v_mov_b32 v{r}, 0")
    for st in range(2):
        off = st * 32 * ldq
        k(f"buffer_load_dwordx4 v[{vB}:{vB+3}], v{vOffK}, s[8:11], 0 offen offset:0" if st == 0 else "")
        k.L.pop()
        if st == 1:
            k(f"v_add_u32 v{vOffK}, {32*ldq}, v{vOffK}")
            k(f"v_add_u32 v{vOffK2}, {32*ldq}, v{vOffK2}")
            k(f"v_add_u32 v{vOffV}, {32*ldq}, v{vOffV}")
            k(f"v_add_u32 v{vOffV2}, {32*ldq}, v{vOffV2}")
        load_qk_frags(k, vB, vOffK, vOffK2, 8)
        k(f"buffer_load_dwordx4 v[{vV}:{vV+3}], v{vOffV}, s[8:11], 0 offen")
        k(f"buffer_load_dwordx2 v[{vV+4}:{vV+5}], v{vOffV2}, s[8:11], 0 offen")
        k("s_waitcnt vmcnt(0)")
        k(f"ds_write_b128 v{vLdsVW}, v[{vV}:{vV+3}]")
        k("v_lshrrev_b32 v4, 5, v1")
        k("v_cmp_eq_u32 vcc, 0, v4")
        k("s_and_saveexec_b64 s[32:33], vcc")
        k(f"ds_write_b64 v{vLdsVW}, v[{vV+4}:{vV+5}] offset:32")
        k("s_mov_b64 exec, s[32:33]")
        k("s_nop 4")
        k(f"v_mfma_f32_32x32x16_bf16 v[{vP}:{vP+15}], v[{vA}:{vA+3}], v[{vB}:{vB+3}], 0")
        k(f"v_mfma_f32_32x32x16_bf16 v[{vP}:{vP+15}], v[{vA+4}:{vA+7}], v[{vB+4}:{vB+7}], v[{vP}:{vP+15}]")
        k("s_nop 15")
        k("s_nop 3")
        if dbg == "P" and st == 0:
            k("v_lshl_add_u32 v3, v2, 6, v1")
            k("s_lshl_b32 s31, s2, 8")
            k("v_add_u32 v3, s31, v3")
            k("v_lshlrev_b32 v3, 6, v3")
            for q in range(16):
                k(f"buffer_store_dword v{vP+q}, v3, s[16:19], 0 offen offset:{4*q}")
            k("s_waitcnt vmcnt(0)")
            k("s_endpgm")
        feature_softmax(k, vP, vPos, vNeg, vBias, T)
        if dbg == "phi" and st == 0:
            k("v_lshl_add_u32 v3, v2, 6, v1")
            k("s_lshl_b32 s31, s2, 8")
            k("v_add_u32 v3, s31, v3")
            k("v_lshlrev_b32 v3, 7, v3")
            for q in range(12):
                k(f"buffer_store_dword v{vPos+q}, v3, s[16:19], 0 offen offset:{4*q}")
                k(f"buffer_store_dword v{vNeg+q}, v3, s[16:19], 0 offen offset:{64+4*q}")
            k("s_waitcnt vmcnt(0)")
            k("s_endpgm")
        for i in range(3):
            for sign, base, boff in ((0, vPos, 0), (1, vNeg, 40)):
                t = T[0]
                k(f"v_cvt_pk_bf16_f32 v{t}, v{base+4*i}, v{base+4*i+1}")
                k(f"v_cvt_pk_bf16_f32 v{t+1}, v{base+4*i+2}, v{base+4*i+3}")
                if i < 2:
                    k(f"ds_write_b64 v{vLdsPhiW}, v[{t}:{t+1}] offset:{16*i + boff}")
                else:
                    k(f"ds_write_b64 v{vLdsPhiW2}, v[{t}:{t+1}] offset:{boff}")
                k("s_nop 0")
                T[0], T[2] = T[2], T[0]
                T[1], T[3] = T[3], T[1]
        k("s_waitcnt lgkmcnt(0)")
        if dbg == "lds" and st == 0:
            k("s_barrier")
            k("v_lshlrev_b32 v3, 13, v2")
            k("v_lshl_add_u32 v3, v1, 4, v3")
            k("s_lshl_b32 s31, s2, 15")
            k("v_add_u32 v4, s31, v3")
            for q in range(8):
                k(f"ds_read_b128 v[{vFa}:{vFa+3}], v3 offset:{1024*q}")
                k("s_waitcnt lgkmcnt(0)")
                k(f"buffer_store_dwordx4 v[{vFa}:{vFa+3}], v4, s[16:19], 0 offen offset:{1024*q}")
                k("s_waitcnt vmcnt(0)")
            k("s_endpgm")
        for mt in range(3):
            k(f"ds_read_b64_tr_b16 v[{vFa+4*mt}:{vFa+4*mt+1}], v{vLdsRa} offset:{32*mt}")
            k(f"ds_read_b64_tr_b16 v[{vFa+4*mt+2}:{vFa+4*mt+3}], v{vLdsRa} offset:{32*mt + 512}")
        for nt in range(2):
            k(f"ds_read_b64_tr_b16 v[{vFb+4*nt}:{vFb+4*nt+1}], v{vLdsRb} offset:{32*nt}")
            k(f"ds_read_b64_tr_b16 v[{vFb+4*nt+2}:{vFb+4*nt+3}], v{vLdsRb} offset:{32*nt + 256}")
        k("s_waitcnt lgkmcnt(0)")
        for mt in range(3):
            for nt in range(2):
                r = vKV + (mt * 2 + nt) * 4
                k(f"v_mfma_f32_16x16x32_bf16 v[{r}:{r+3}], v[{vFa+4*mt}:{vFa+4*mt+3}], v[{vFb+4*nt}:{vFb+4*nt+3}], v[{r}:{r+3}]")
        k("s_nop 7")
        k("s_nop 7")
    k("v_lshrrev_b32 v3, 4, v1")
    k("v_and_b32 v4, 15, v1")
    k("v_lshlrev_b32 v3, 2, v3")
    k("v_lshlrev_b32 v3, 7, v3")
    k("v_lshl_add_u32 v3, v4, 2, v3")
    k(f"s_lshl_b32 s29, s{sHead}, 5")
    k(f"s_lshl_b32 s30, s{sChunk}, 2")
    k("s_add_u32 s29, s29, s30")
    k("v_add_u32 v4, s29, v2")
    k(f"v_mul_u32_u24 v4, {48*32*4}, v4")
    k("v_add_u32 v3, v3, v4")
    for mt in range(3):
        if mt:
            k(f"v_add_u32 v3, 2048, v3")
        for nt in range(2):
            r = vKV + (mt * 2 + nt) * 4
            for q in range(4):
                k(f"buffer_store_dword v{r+q}, v3, s[16:19], 0 offen offset:{q*128 + 64*nt}")
    k.lab(end)
    k("s_endpgm")
    return k, dict(vgprs=144, sgprs=40, lds=32768, grid=NWG)


def gen_attn(name, QKV, PHI, KVP, O, nparts=32):
    ldq = 3840
    ldo = 1280
    k = Kern(name)
    end = k.newlabel("Lend")
    NWG = 256
    k(f"s_cmp_ge_u32 s2, {NWG}")
    k(f"s_cbranch_scc1 {end}")
    k(f"s_load_dwordx2 s[4:5], s[0:1], {KARG[QKV.slot]}")
    k(f"s_load_dwordx2 s[6:7], s[0:1], {KARG[PHI.slot]}")
    k(f"s_load_dwordx2 s[24:25], s[0:1], {KARG[KVP.slot]}")
    k(f"s_load_dwordx2 s[36:37], s[0:1], {KARG[O.slot]}")
    sHead, sChunk = 26, 28
    k(f"s_lshr_b32 s{sHead}, s2, 3")
    k(f"s_and_b32 s{sChunk}, s2, 7")
    k("s_waitcnt lgkmcnt(0)")
    emit_srd(k, 8, 4, QKV)
    emit_srd(k, 12, 6, PHI)
    emit_srd(k, 16, 24, KVP)
    emit_srd(k, 20, 36, O)
    vLane, vWave = 1, 2
    k("v_and_b32 v1, 63, v0")
    k("v_lshrrev_b32 v2, 6, v0")
    vA = 8
    vB = 16
    vP = 24
    vPos = 40
    vNeg = 52
    vKA = 64
    vBq = 80
    vN = 96
    T = list(range(112, 132))
    vOffQ, vOffQ2, vBias, vOffO = 132, 133, 134, 135
    k(f"s_mul_i32 s29, s{sHead}, {nparts * 48 * 32 * 4}")
    k("v_lshlrev_b32 v3, 3, v0")
    k("v_add_u32 v3, s29, v3")
    acc = [T[0], T[1], T[2], T[3], T[4], T[5]]
    for q in range(6):
        k(f"v_mov_b32 v{acc[q]}, 0")
    ld = list(range(vP, vP + 6 * 4))
    for p0 in range(0, nparts, 4):
        for pp in range(4):
            for i in range(3):
                r = vP + (pp * 3 + i) * 2
                k(f"buffer_load_dwordx2 v[{r}:{r+1}], v3, s[16:19], 0 offen offset:{(p0 + pp) * 6144 % 4096 if False else 0}")
                k.L.pop()
                k(f"v_add_u32 v4, {(p0 + pp) * 6144 + i * 2048}, v3")
                k(f"buffer_load_dwordx2 v[{r}:{r+1}], v4, s[16:19], 0 offen")
        k("s_waitcnt vmcnt(0)")
        for pp in range(4):
            for i in range(3):
                r = vP + (pp * 3 + i) * 2
                k(f"v_add_f32 v{acc[2*i]}, v{acc[2*i]}, v{r}")
                k(f"v_add_f32 v{acc[2*i+1]}, v{acc[2*i+1]}, v{r+1}")
    k("v_lshlrev_b32 v3, 2, v0")
    for i in range(3):
        k(f"v_cvt_pk_bf16_f32 v{T[6+i]}, v{acc[2*i]}, v{acc[2*i+1]}")
        k(f"ds_write_b32 v3, v{T[6+i]} offset:{1024*i}")
    k(f"v_mov_b32 v{T[9]}, 0")
    k(f"ds_write_b32 v3, v{T[9]} offset:4096")
    k("s_waitcnt lgkmcnt(0)")
    k("s_barrier")
    load_wphiT_frags(k, vA, 12, sHead, vLane, [3, 4, 5, 6] + T)
    k("v_and_b32 v3, 31, v1")
    k("v_lshrrev_b32 v4, 5, v1")
    k("v_lshlrev_b32 v5, 1, v3")
    k("v_lshl_add_u32 v5, v4, 8, v5")
    k("v_cmp_ge_u32 vcc, 20, v3")
    k("v_mov_b32 v6, 4096")
    k("s_nop 1")
    k("v_cndmask_b32 v5, v6, v5, vcc")
    k("v_cmp_eq_u32 vcc, 0, v4")
    k("s_nop 1")
    k("v_cndmask_b32 v7, v6, v5, vcc")
    raw = list(range(vBq, vBq + 16))
    for m in range(4):
        sign, i0 = m >> 1, 2 * (m & 1)
        for j in range(8):
            blk = i0 + (j >> 2)
            fbase = 8 * blk + (j & 3)
            frow = fbase + 20 * sign
            if blk == 3:
                k(f"v_mov_b32 v{raw[j]}, 0")
            else:
                va = 5 if blk < 2 else 7
                k(f"v_add_u32 v{T[10]}, {frow*64}, v{va}")
                k(f"v_cmp_eq_u32 vcc, 4096, v{va}")
                k("s_nop 1")
                k(f"v_cndmask_b32 v{T[10]}, v{T[10]}, v{va}, vcc")
                k(f"ds_read_u16 v{raw[j]}, v{T[10]}")
        k("s_waitcnt lgkmcnt(0)")
        for j in range(4):
            k(f"v_lshl_or_b32 v{vKA+4*m+j}, v{raw[2*j+1]}, 16, v{raw[2*j]}")
    k("v_and_b32 v3, 31, v1")
    k("v_lshrrev_b32 v4, 5, v1")
    k(f"s_lshl_b32 s29, s{sChunk}, 8")
    k("v_lshl_add_u32 v5, v2, 6, v3")
    k("v_add_u32 v5, s29, v5")
    k(f"v_mul_u32_u24 v6, {ldq}, v5")
    k(f"s_mul_i32 s30, s{sHead}, 40")
    k("v_lshl_add_u32 v6, v4, 4, v6")
    k(f"v_add_u32 v{vOffQ}, s30, v6")
    k(f"v_add_u32 v{vOffQ2}, 32, v{vOffQ}")
    k("v_mov_b32 v7, 0x7ffffff0")
    k("v_cmp_eq_u32 vcc, 0, v4")
    k("s_nop 1")
    k(f"v_cndmask_b32 v{vOffQ2}, v7, v{vOffQ2}, vcc")
    k(f"v_mov_b32 v{vBias}, {NEG_INF}")
    k(f"v_cndmask_b32 v{vBias}, v{vBias}, 0, vcc")
    k(f"v_mul_u32_u24 v6, {ldo}, v5")
    k("v_lshl_add_u32 v6, v4, 3, v6")
    k(f"v_add_u32 v{vOffO}, s30, v6")
    for st in range(2):
        if st == 1:
            k(f"v_add_u32 v{vOffQ}, {32*ldq}, v{vOffQ}")
            k(f"v_add_u32 v{vOffQ2}, {32*ldq}, v{vOffQ2}")
            k(f"v_add_u32 v{vOffO}, {32*ldo}, v{vOffO}")
        load_qk_frags(k, vB, vOffQ, vOffQ2, 8)
        k("s_waitcnt vmcnt(0)")
        k("s_nop 1")
        k(f"v_mfma_f32_32x32x16_bf16 v[{vP}:{vP+15}], v[{vA}:{vA+3}], v[{vB}:{vB+3}], 0")
        k(f"v_mfma_f32_32x32x16_bf16 v[{vP}:{vP+15}], v[{vA+4}:{vA+7}], v[{vB+4}:{vB+7}], v[{vP}:{vP+15}]")
        k("s_nop 15")
        k("s_nop 3")
        feature_softmax(k, vP, vPos, vNeg, vBias, T)
        for m in range(4):
            sign, i0 = m >> 1, 2 * (m & 1)
            base = vNeg if sign else vPos
            for half in range(2):
                blk = i0 + half
                d0 = vBq + 4 * m + 2 * half
                if blk == 3:
                    k(f"v_mov_b32 v{d0}, 0")
                    k(f"v_mov_b32 v{d0+1}, 0")
                else:
                    k(f"v_cvt_pk_bf16_f32 v{d0}, v{base+4*blk}, v{base+4*blk+1}")
                    k(f"v_cvt_pk_bf16_f32 v{d0+1}, v{base+4*blk+2}, v{base+4*blk+3}")
        k("s_nop 1")
        k(f"v_mfma_f32_32x32x16_bf16 v[{vN}:{vN+15}], v[{vKA}:{vKA+3}], v[{vBq}:{vBq+3}], 0")
        for m in range(1, 4):
            k(f"v_mfma_f32_32x32x16_bf16 v[{vN}:{vN+15}], v[{vKA+4*m}:{vKA+4*m+3}], v[{vBq+4*m}:{vBq+4*m+3}], v[{vN}:{vN+15}]")
        k("s_nop 15")
        k("s_nop 3")
        t0, t1, t2 = T[0], T[1], T[2]
        k(f"v_mov_b32 v{t0}, v{vN+8}")
        k(f"v_mov_b32 v{t1}, v{vN+8}")
        k("s_nop 1")
        k(f"v_permlane32_swap_b32 v{t0}, v{t1}")
        k(f"v_cvt_pk_bf16_f32 v{t1}, v{t1}, v{t1}")
        k(f"v_lshlrev_b32 v{t1}, 16, v{t1}")
        k(f"v_add_f32 v{t1}, {hex_f32(1e-6)}, v{t1}")
        k(f"v_cvt_pk_bf16_f32 v{t1}, v{t1}, v{t1}")
        k(f"v_lshlrev_b32 v{t1}, 16, v{t1}")
        k(f"v_rcp_f32 v{t1}, v{t1}")
        k("s_nop 0")
        for blk in range(3):
            r = vN + 4 * blk
            k(f"v_cvt_pk_bf16_f32 v{t2}, v{r}, v{r+1}")
            k(f"v_cvt_pk_bf16_f32 v{t2+1}, v{r+2}, v{r+3}")
            k(f"v_lshlrev_b32 v{r}, 16, v{t2}")
            k(f"v_and_b32 v{r+1}, 0xffff0000, v{t2}")
            k(f"v_lshlrev_b32 v{r+2}, 16, v{t2+1}")
            k(f"v_and_b32 v{r+3}, 0xffff0000, v{t2+1}")
            for q in range(4):
                k(f"v_mul_f32 v{r+q}, v{r+q}, v{t1}")
            k(f"v_cvt_pk_bf16_f32 v{r}, v{r}, v{r+1}")
            k(f"v_cvt_pk_bf16_f32 v{r+1}, v{r+2}, v{r+3}")
        k(f"buffer_store_dwordx2 v[{vN}:{vN+1}], v{vOffO}, s[20:23], 0 offen")
        k(f"buffer_store_dwordx2 v[{vN+4}:{vN+5}], v{vOffO}, s[20:23], 0 offen offset:16")
        k("v_lshrrev_b32 v4, 5, v1")
        k("v_cmp_eq_u32 vcc, 0, v4")
        k("s_and_saveexec_b64 s[32:33], vcc")
        k(f"buffer_store_dwordx2 v[{vN+8}:{vN+9}], v{vOffO}, s[20:23], 0 offen offset:32")
        k("s_mov_b64 exec, s[32:33]")
        k("s_waitcnt vmcnt(0)")
    k.lab(end)
    k("s_endpgm")
    return k, dict(vgprs=144, sgprs=40, lds=8192, grid=NWG)
```

```python
import sys
from asmlib import *

HEADER = open("interleave_layers__linear_kernel_hedgehog__mixer_gmlp__prompt.s.ref").read().split("; @launch")[0]

def assemble_file(kernels, path):
    pass

def write_s(path, klist, order):
    lines = [HEADER.rstrip("\n")]
    for name in order:
        k, info = klist[name]
        lines.append(f"; @launch kernel={name} grid=({info['grid']},1,1) block=({info.get('block',256)},1,1) lds={info['lds']}")
    lines.append('.amdgcn_target "amdgcn-amd-amdhsa--gfx950"')
    lines.append(".text")
    for name, (k, info) in klist.items():
        lines.append(kernel_wrap(k, info['vgprs'], info['sgprs']))
    open(path, "w").write("\n".join(lines) + "\n")
```

```python
from asmlib import *
from lnk import hex_f32

def gen_gemm(name, M, N, K, Mt, Nt, A, lda, B, ldb, C, ldc, epi="plain", extra=None):
    assert Nt == 128 and Mt in (64, 128)
    Kt = 64
    T = K // Kt
    assert K % Kt == 0 and T % 2 == 0
    MT, NT = M // Mt, N // Nt
    assert M % Mt == 0 and N % Nt == 0
    NWG = MT * NT
    assert NWG % 8 == 0
    a = Mt // 32
    b = Nt // 32
    JA = Mt // 32
    JB = Nt // 32
    A_LDS = Mt * 128
    B_LDS = 64 * 256
    BUF = A_LDS + B_LDS
    k = Kern(name)
    SRD_A, SRD_B, SRD_C = 8, 12, 16
    sM, sN = 27, 28
    sKA, sKB = 29, 30
    sIt = 31
    end = k.newlabel("Lend")
    k(f"s_cmp_ge_u32 s2, {NWG}")
    k(f"s_cbranch_scc1 {end}")
    k(f"s_load_dwordx2 s[4:5], s[0:1], {KARG[A.slot]}")
    k(f"s_load_dwordx2 s[6:7], s[0:1], {KARG[B.slot]}")
    k(f"s_load_dwordx2 s[24:25], s[0:1], {KARG[C.slot]}")
    k("s_and_b32 s26, s2, 7")
    k("s_lshr_b32 s27, s2, 3")
    k(f"s_mul_i32 s26, s26, {NWG // 8}")
    k("s_add_u32 s26, s26, s27")
    mg = magic_div(NT, NWG + 16)
    k(f"s_mul_hi_u32 s27, s26, {mg}")
    k(f"s_mul_i32 s28, s27, {NT}")
    k("s_sub_u32 s28, s26, s28")
    k(f"s_mul_i32 s{sM}, s27, {Mt}")
    k(f"s_mul_i32 s{sN}, s28, {Nt}")
    k("s_waitcnt lgkmcnt(0)")
    emit_srd(k, SRD_A, 4, A)
    emit_srd(k, SRD_B, 6, B)
    emit_srd(k, SRD_C, 24, C)
    vLane, vWave = 1, 2
    vT = [3, 4, 5, 6, 7]
    vGA = list(range(8, 8 + JA))
    vGB = list(range(12, 12 + JB))
    vWA, vWB = 16, 17
    vRA = [18, 19]
    vRB = [20, 21, 22, 23]
    vSTG = 24
    nst = (JA + JB) * 4
    vFA = vSTG + nst
    vFB = vFA + 2 * a * 4
    vACC = vFB + 2 * b * 4
    vACC = (vACC + 3) // 4 * 4
    vEND = vACC + a * b * 4
    def fa(s, i): return vFA + (s * a + i) * 4
    def fb(s, j): return vFB + (s * b + j) * 4
    def acc(i, j): return vACC + (i * b + j) * 4
    def rng(r, n=4): return f"v[{r}:{r+n-1}]"

    k("v_and_b32 v1, 63, v0")
    k("v_lshrrev_b32 v2, 6, v0")
    k("v_lshrrev_b32 v3, 3, v0")
    k("v_and_b32 v4, 7, v0")
    k(f"v_add_u32 v5, s{sM}, v3")
    k(f"v_mul_u32_u24 v5, {lda}, v5")
    k(f"v_lshl_add_u32 v{vGA[0]}, v4, 4, v5")
    for j in range(1, JA):
        k(f"v_add_u32 v{vGA[j]}, {32 * j * lda}, v{vGA[0]}")
    k("v_and_b32 v5, 7, v3")
    k("v_xor_b32 v5, v4, v5")
    k("v_lshlrev_b32 v5, 4, v5")
    k(f"v_lshl_add_u32 v{vWA}, v3, 7, v5")
    k("v_lshrrev_b32 v3, 4, v0")
    k("v_and_b32 v4, 15, v0")
    k(f"v_mul_u32_u24 v5, {ldb}, v3")
    k("v_lshl_add_u32 v5, v4, 4, v5")
    k(f"v_lshlrev_b32 v6, 1, s{sN}")
    k(f"v_add_u32 v{vGB[0]}, v5, v6")
    for j in range(1, JB):
        k(f"v_add_u32 v{vGB[j]}, {16 * j * ldb}, v{vGB[0]}")
    k("v_and_b32 v5, 3, v3")
    k("v_lshrrev_b32 v6, 3, v3")
    k("v_and_b32 v6, 1, v6")
    k("v_lshl_add_u32 v5, v6, 2, v5")
    k("v_lshrrev_b32 v6, 1, v4")
    k("v_xor_b32 v5, v6, v5")
    k("v_lshlrev_b32 v5, 5, v5")
    k("v_and_b32 v6, 1, v4")
    k("v_lshl_add_u32 v5, v6, 4, v5")
    k(f"v_lshl_add_u32 v{vWB}, v3, 8, v5")
    k("v_lshrrev_b32 v3, 1, v2")
    k("v_and_b32 v4, 1, v2")
    k("v_lshrrev_b32 v5, 4, v1")
    k("v_and_b32 v6, 15, v1")
    k(f"v_mul_u32_u24 v7, {Mt // 2}, v3")
    k("v_add_u32 v7, v7, v6")
    k("v_lshlrev_b32 v7, 7, v7")
    for s in range(2):
        k(f"v_add_u32 v{vRA[s]}, {4 * s}, v5")
        k(f"v_and_b32 v{vT[0]}, 7, v6")
        k(f"v_xor_b32 v{vRA[s]}, v{vRA[s]}, v{vT[0]}")
        k(f"v_lshl_add_u32 v{vRA[s]}, v{vRA[s]}, 4, v7")
    k("v_lshrrev_b32 v3, 2, v6")
    k("v_and_b32 v7, 1, v5")
    k("v_lshl_add_u32 v7, v7, 2, v3")
    tmpb = vSTG
    k(f"v_lshl_add_u32 v{tmpb}, v5, 3, v3")
    k(f"v_lshlrev_b32 v{tmpb}, 8, v{tmpb}")
    k(f"v_and_b32 v{tmpb+1}, 3, v6")
    k(f"v_lshl_add_u32 v{tmpb}, v{tmpb+1}, 3, v{tmpb}")
    k(f"v_lshlrev_b32 v{tmpb+1}, 2, v4")
    for j in range(b):
        k(f"v_add_u32 v{tmpb+2}, {j}, v{tmpb+1}")
        k(f"v_xor_b32 v{tmpb+2}, v{tmpb+2}, v7")
        k(f"v_lshl_add_u32 v{vRB[j]}, v{tmpb+2}, 5, v{tmpb}")
    for r in range(vACC, vEND):
        k(f"v_mov_b32 v{r}, 0")

    abl = (extra or {}).get("abl", "")
    def gload(first):
        if "noload" in abl and not first:
            return
        for j in range(JA):
            r = vSTG + j * 4
            k(f"buffer_load_dwordx4 {rng(r)}, v{vGA[j]}, s[{SRD_A}:{SRD_A+3}], s{sKA} offen")
        for j in range(JB):
            r = vSTG + (JA + j) * 4
            k(f"buffer_load_dwordx4 {rng(r)}, v{vGB[j]}, s[{SRD_B}:{SRD_B+3}], s{sKB} offen")
    def advance():
        k(f"s_add_u32 s{sKA}, s{sKA}, 128")
        k(f"s_add_u32 s{sKB}, s{sKB}, {64 * ldb}")
    def lwrite(buf):
        if "nowrite" in abl:
            return
        base = buf * BUF
        for j in range(JA):
            r = vSTG + j * 4
            k(f"ds_write_b128 v{vWA}, {rng(r)} offset:{base + 4096 * j}")
        for j in range(JB):
            r = vSTG + (JA + j) * 4
            k(f"ds_write_b128 v{vWB}, {rng(r)} offset:{base + A_LDS + 4096 * j}")
    def compute(buf):
        if "nomfma" in abl:
            return
        base = buf * BUF
        nreads = []
        for s in range(2):
            for i in range(a):
                if "noreadA" in abl: continue
                k(f"ds_read_b128 {rng(fa(s, i))}, v{vRA[s]} offset:{base + 2048 * i}")
            for j in range(b):
                if "noreadB" in abl: continue
                o = base + A_LDS + s * 8192
                k(f"ds_read_b64_tr_b16 {rng(fb(s, j), 2)}, v{vRB[j]} offset:{o}")
                k(f"ds_read_b64_tr_b16 {rng(fb(s, j) + 2, 2)}, v{vRB[j]} offset:{o + 1024}")
        per = a + 2 * b
        for s in range(2):
            k(f"s_waitcnt lgkmcnt({per if (s == 0 and not abl) else 0})")
            for i in range(a):
                for j in range(b):
                    k(f"v_mfma_f32_16x16x32_bf16 {rng(acc(i, j))}, {rng(fb(s, j))}, {rng(fa(s, i))}, {rng(acc(i, j))}")

    k(f"s_mov_b32 s{sKA}, 0")
    k(f"s_mov_b32 s{sKB}, 0")
    gload(True)
    k("s_waitcnt vmcnt(0)")
    lwrite(0)
    advance()
    gload(False)
    k("s_waitcnt lgkmcnt(0)")
    k("s_barrier")
    k(f"s_mov_b32 s{sIt}, 0")
    loop = k.newlabel("Lloop")
    skip1 = k.newlabel("Lskip1")
    skip2 = k.newlabel("Lskip2")
    k.lab(loop)
    compute(0)
    k("s_waitcnt vmcnt(0)")
    lwrite(1)
    k(f"s_cmp_ge_u32 s{sIt}, {T // 2 - 1}")
    k(f"s_cbranch_scc1 {skip1}")
    advance()
    gload(False)
    k.lab(skip1)
    k("s_waitcnt lgkmcnt(0)")
    k("s_barrier")
    compute(1)
    k(f"s_cmp_ge_u32 s{sIt}, {T // 2 - 1}")
    k(f"s_cbranch_scc1 {skip2}")
    k("s_waitcnt vmcnt(0)")
    lwrite(0)
    advance()
    gload(False)
    k("s_waitcnt lgkmcnt(0)")
    k("s_barrier")
    k(f"s_add_u32 s{sIt}, s{sIt}, 1")
    k(f"s_branch {loop}")
    k.lab(skip2)

    k("s_nop 7")
    k("s_nop 7")
    k("v_lshrrev_b32 v3, 1, v2")
    k("v_and_b32 v4, 1, v2")
    k("v_lshrrev_b32 v5, 4, v1")
    k("v_and_b32 v6, 15, v1")
    k(f"v_mul_u32_u24 v7, {Mt // 2}, v3")
    k("v_add_u32 v7, v7, v6")
    k(f"v_add_u32 v7, s{sM}, v7")
    k(f"v_mul_u32_u24 v7, {ldc}, v7")
    k("v_lshlrev_b32 v3, 6, v4")
    k("v_lshl_add_u32 v3, v5, 2, v3")
    k(f"v_add_u32 v3, s{sN}, v3")
    k("v_lshl_add_u32 v7, v3, 1, v7")
    vC = [vSTG + i for i in range(a)]
    k(f"v_mov_b32 v{vC[0]}, v7")
    for i in range(1, a):
        k(f"v_add_u32 v{vC[i]}, {16 * i * ldc}, v7")
    def unpack(dst_lo, dst_hi, src):
        k(f"v_lshlrev_b32 v{dst_lo}, 16, v{src}")
        k(f"v_and_b32 v{dst_hi}, 0xffff0000, v{src}")
    tiles = [(i, j) for i in range(a) for j in range(b)]
    if epi == "plain":
        t0 = vFA
        for n_, (i, j) in enumerate(tiles):
            r = acc(i, j)
            t = t0 + (n_ % 8) * 2
            k(f"v_cvt_pk_bf16_f32 v{t}, v{r}, v{r+1}")
            k(f"v_cvt_pk_bf16_f32 v{t+1}, v{r+2}, v{r+3}")
            k(f"buffer_store_dwordx2 v[{t}:{t+1}], v{vC[i]}, s[{SRD_C}:{SRD_C+3}], 0 offen offset:{32 * j}")
            if n_ % 8 == 7:
                k("s_waitcnt vmcnt(0)")
    elif epi == "resid":
        X = extra["X"]
        k(f"s_load_dwordx2 s[36:37], s[0:1], {KARG[X.slot]}")
        k("s_waitcnt lgkmcnt(0)")
        emit_srd(k, 20, 36, X)
        xo = vFA
        for n_, (i, j) in enumerate(tiles):
            k(f"buffer_load_dwordx2 v[{xo+2*n_}:{xo+2*n_+1}], v{vC[i]}, s[20:23], 0 offen offset:{32 * j}")
        k("s_waitcnt vmcnt(0)")
        for n_, (i, j) in enumerate(tiles):
            r = acc(i, j)
            t = vSTG + 8
            k(f"v_cvt_pk_bf16_f32 v{t}, v{r}, v{r+1}")
            k(f"v_cvt_pk_bf16_f32 v{t+1}, v{r+2}, v{r+3}")
            unpack(r, r + 1, t)
            unpack(r + 2, r + 3, t + 1)
            unpack(t + 2, t + 3, xo + 2 * n_)
            unpack(t + 4, t + 5, xo + 2 * n_ + 1)
            for q in range(4):
                k(f"v_add_f32 v{r+q}, v{r+q}, v{t+2+q}")
            k(f"v_cvt_pk_bf16_f32 v{r}, v{r}, v{r+1}")
            k(f"v_cvt_pk_bf16_f32 v{r+1}, v{r+2}, v{r+3}")
            k(f"buffer_store_dwordx2 v[{r}:{r+1}], v{vC[i]}, s[{SRD_C}:{SRD_C+3}], 0 offen offset:{32 * j}")
    elif epi == "gelu":
        c1 = 0.7978845608028654 * 2.0 * 1.4426950408889634
        c2 = 0.7978845608028654 * 0.044715 * 2.0 * 1.4426950408889634
        k(f"s_mov_b32 s36, {hex_f32(c2)}")
        k(f"v_mov_b32 v{vSTG+8}, {hex_f32(c1)}")
        vc1 = vSTG + 8
        for n_, (i, j) in enumerate(tiles):
            r = acc(i, j)
            t = vSTG + 10
            k(f"v_cvt_pk_bf16_f32 v{t}, v{r}, v{r+1}")
            k(f"v_cvt_pk_bf16_f32 v{t+1}, v{r+2}, v{r+3}")
            unpack(r, r + 1, t)
            unpack(r + 2, r + 3, t + 1)
            for q in range(4):
                x = r + q
                u = t + 2 + q
                k(f"v_mul_f32 v{u}, v{x}, v{x}")
                k(f"v_fma_f32 v{u}, v{u}, s36, v{vc1}")
                k(f"v_mul_f32 v{u}, v{u}, v{x}")
                k(f"v_exp_f32 v{u}, v{u}")
            for q in range(4):
                x = r + q
                u = t + 2 + q
                k(f"v_add_f32 v{u}, 1.0, v{u}")
                k(f"v_rcp_f32 v{u}, v{u}")
            k("s_nop 0")
            for q in range(4):
                x = r + q
                u = t + 2 + q
                k(f"v_fma_f32 v{x}, -v{x}, v{u}, v{x}")
            k(f"v_cvt_pk_bf16_f32 v{r}, v{r}, v{r+1}")
            k(f"v_cvt_pk_bf16_f32 v{r+1}, v{r+2}, v{r+3}")
            k(f"buffer_store_dwordx2 v[{r}:{r+1}], v{vC[i]}, s[{SRD_C}:{SRD_C+3}], 0 offen offset:{32 * j}")
    elif epi == "spatial":
        Z1, ldz, BIAS = extra["Z1"], extra["ldz"], extra["BIAS"]
        k(f"s_load_dwordx2 s[36:37], s[0:1], {KARG[Z1.slot]}")
        k(f"s_load_dwordx2 s[38:39], s[0:1], {KARG[BIAS.slot]}")
        k("s_waitcnt lgkmcnt(0)")
        emit_srd(k, 20, 36, Z1)
        emit_srd(k, 32, 38, BIAS)
        vZ = [vSTG + 8 + i for i in range(a)]
        vB = [vSTG + 16 + i for i in range(a)]
        k("v_lshrrev_b32 v3, 1, v2")
        k(f"v_mul_u32_u24 v3, {Mt // 2}, v3")
        k("v_add_u32 v3, v3, v6")
        k(f"v_add_u32 v3, s{sM}, v3")
        k("v_lshlrev_b32 v4, 6, v4")
        k("v_lshl_add_u32 v4, v5, 2, v4")
        k(f"v_add_u32 v4, s{sN}, v4")
        for i in range(a):
            k(f"v_add_u32 v{vB[i]}, {16 * i}, v3")
            k(f"v_mul_u32_u24 v{vZ[i]}, {ldz}, v{vB[i]}")
            k(f"v_lshl_add_u32 v{vZ[i]}, v4, 1, v{vZ[i]}")
            k(f"v_lshlrev_b32 v{vB[i]}, 1, v{vB[i]}")
        zo = vFA
        for n_, (i, j) in enumerate(tiles):
            k(f"buffer_load_dwordx2 v[{zo+2*n_}:{zo+2*n_+1}], v{vZ[i]}, s[20:23], 0 offen offset:{32 * j}")
        bo = vFA + 2 * len(tiles)
        for i in range(a):
            k(f"buffer_load_ushort v{bo+i}, v{vB[i]}, s[32:35], 0 offen")
        k("s_waitcnt vmcnt(0)")
        for i in range(a):
            k(f"v_lshlrev_b32 v{bo+i}, 16, v{bo+i}")
        for n_, (i, j) in enumerate(tiles):
            r = acc(i, j)
            t = bo + a
            assert t + 6 <= vACC
            k(f"v_cvt_pk_bf16_f32 v{t}, v{r}, v{r+1}")
            k(f"v_cvt_pk_bf16_f32 v{t+1}, v{r+2}, v{r+3}")
            unpack(r, r + 1, t)
            unpack(r + 2, r + 3, t + 1)
            for q in range(4):
                k(f"v_add_f32 v{r+q}, v{r+q}, v{bo+i}")
            k(f"v_cvt_pk_bf16_f32 v{t}, v{r}, v{r+1}")
            k(f"v_cvt_pk_bf16_f32 v{t+1}, v{r+2}, v{r+3}")
            unpack(r, r + 1, t)
            unpack(r + 2, r + 3, t + 1)
            unpack(t + 2, t + 3, zo + 2 * n_)
            unpack(t + 4, t + 5, zo + 2 * n_ + 1)
            for q in range(4):
                k(f"v_mul_f32 v{r+q}, v{r+q}, v{t+2+q}")
            k(f"v_cvt_pk_bf16_f32 v{r}, v{r}, v{r+1}")
            k(f"v_cvt_pk_bf16_f32 v{r+1}, v{r+2}, v{r+3}")
            k(f"buffer_store_dwordx2 v[{r}:{r+1}], v{vC[i]}, s[{SRD_C}:{SRD_C+3}], 0 offen offset:{32 * j}")
    else:
        raise NotImplementedError(epi)
    k.lab(end)
    k("s_endpgm")
    return k, dict(vgprs=vEND, sgprs=48, lds=2 * BUF, grid=NWG)


def check_layouts(Mt=128):
    import collections
    Amap = {}
    for tid in range(256):
        row0, chunk = tid >> 3, tid & 7
        for j in range(Mt // 32):
            row = row0 + 32 * j
            addr = row0 * 128 + ((chunk ^ (row0 & 7)) << 4) + 4096 * j
            Amap[addr] = (row, chunk)
    for wave in range(4):
        wm = wave >> 1
        for s in range(2):
            for i in range(Mt // 32):
                for lane in range(64):
                    g, p = lane >> 4, lane & 15
                    ra = (wm * (Mt // 2) + p) * 128 + (((4 * s + g) ^ (p & 7)) << 4) + 2048 * i
                    exp = (wm * (Mt // 2) + 16 * i + p, 4 * s + g)
                    assert Amap[ra] == exp, (Amap[ra], exp)
    Bmap = {}
    for tid in range(256):
        k0, u = tid >> 4, tid & 15
        f = (k0 & 3) + 4 * ((k0 >> 3) & 1)
        for j in range(4):
            kk = k0 + 16 * j
            addr = k0 * 256 + (((u >> 1) ^ f) << 5) + ((u & 1) << 4) + 4096 * j
            Bmap[addr] = (kk, u)
    for wave in range(4):
        wn = wave & 1
        for s in range(2):
            for j in range(4):
                for half in range(2):
                    for lane in range(64):
                        g, p = lane >> 4, lane & 15
                        rr, cc = p >> 2, p & 3
                        f = rr + 4 * (g & 1)
                        rb = (8 * g + rr) * 256 + (((wn * 4 + j) ^ f) << 5) + cc * 8 + s * 8192 + half * 1024
                        unit_addr = rb & ~15
                        kk, u = Bmap[unit_addr]
                        col = u * 8 + ((rb & 15) >> 1)
                        assert kk == 32 * s + 8 * g + rr + 4 * half, (kk, s, g, rr, half)
                        assert col == wn * 64 + 16 * j + 4 * cc, (col, wn, j, cc)
    print("layout check ok")

if __name__ == "__main__":
    check_layouts(128)
    check_layouts(64)
```

```python
from asmlib import *

def wave_sum_allreduce(k, v, tmp, stmp):
    for sh in (8, 4, 2, 1):
        k("s_nop 1")
        k(f"v_add_f32_dpp v{tmp}, v{v}, v{v} row_ror:{sh} row_mask:0xf bank_mask:0xf")
        k(f"v_mov_b32 v{v}, v{tmp}")
    k("s_nop 1")
    k(f"v_readlane_b32 s{stmp}, v{v}, 0")
    k(f"v_readlane_b32 s{stmp+1}, v{v}, 16")
    k(f"v_readlane_b32 s{stmp+2}, v{v}, 32")
    k(f"v_readlane_b32 s{stmp+3}, v{v}, 48")
    k("s_nop 1")
    k(f"v_mov_b32 v{v}, s{stmp}")
    k(f"v_add_f32 v{v}, s{stmp+1}, v{v}")
    k(f"v_add_f32 v{v}, s{stmp+2}, v{v}")
    k(f"v_add_f32 v{v}, s{stmp+3}, v{v}")

def round_bf16(k, dst, src):
    k(f"v_cvt_pk_bf16_f32 v{dst}, v{src}, v{src}")
    k(f"v_lshlrev_b32 v{dst}, 16, v{dst}")

def gen_ln(name, nrows, ncols, IN, ld_in, col0_bytes, OUT, ld_out):
    P = ncols // 128
    assert ncols % 128 == 0
    NWG = nrows // 4
    k = Kern(name)
    end = k.newlabel("Lend")
    k(f"s_cmp_ge_u32 s2, {NWG}")
    k(f"s_cbranch_scc1 {end}")
    k(f"s_load_dwordx2 s[4:5], s[0:1], {KARG[IN.slot]}")
    k(f"s_load_dwordx2 s[6:7], s[0:1], {KARG[OUT.slot]}")
    k("s_waitcnt lgkmcnt(0)")
    emit_srd(k, 8, 4, IN)
    emit_srd(k, 12, 6, OUT)
    k("v_and_b32 v1, 63, v0")
    k("v_lshrrev_b32 v2, 6, v0")
    k("s_lshl_b32 s16, s2, 2")
    k("v_add_u32 v2, s16, v2")
    k(f"v_mul_u32_u24 v3, {ld_in}, v2")
    k("v_lshl_add_u32 v3, v1, 2, v3")
    k(f"v_mul_u32_u24 v4, {ld_out}, v2")
    k("v_lshl_add_u32 v4, v1, 2, v4")
    vW = 8
    vX = vW + 8
    for i in range(P):
        k(f"buffer_load_dword v{vW+i}, v3, s[8:11], 0 offen offset:{col0_bytes + 256*i}")
    k("s_waitcnt vmcnt(0)")
    for i in range(P):
        k(f"v_lshlrev_b32 v{vX+2*i}, 16, v{vW+i}")
        k(f"v_and_b32 v{vX+2*i+1}, 0xffff0000, v{vW+i}")
    n = 2 * P
    vS, vTmp, vMean = 5, 6, 7
    k(f"v_add_f32 v{vS}, v{vX}, v{vX+1}")
    for i in range(2, n):
        k(f"v_add_f32 v{vS}, v{vS}, v{vX+i}")
    wave_sum_allreduce(k, vS, vTmp, 20)
    k(f"v_mul_f32 v{vMean}, {hex_f32(1.0/ncols)}, v{vS}")
    vD = vX + n
    k(f"v_sub_f32 v{vD}, v{vX}, v{vMean}")
    k(f"v_mul_f32 v{vS}, v{vD}, v{vD}")
    for i in range(1, n):
        k(f"v_sub_f32 v{vD}, v{vX+i}, v{vMean}")
        k(f"v_fmac_f32 v{vS}, v{vD}, v{vD}")
    wave_sum_allreduce(k, vS, vTmp, 20)
    k(f"v_mul_f32 v{vS}, {hex_f32(1.0/ncols)}, v{vS}")
    round_bf16(k, vMean, vMean)
    round_bf16(k, vS, vS)
    k(f"v_add_f32 v{vS}, {hex_f32(1e-5)}, v{vS}")
    round_bf16(k, vS, vS)
    k(f"v_sqrt_f32 v{vS}, v{vS}")
    k("s_nop 0")
    round_bf16(k, vS, vS)
    k(f"v_rcp_f32 v{vS}, v{vS}")
    k("s_nop 0")
    for i in range(P):
        a, b = vX + 2*i, vX + 2*i + 1
        k(f"v_sub_f32 v{a}, v{a}, v{vMean}")
        k(f"v_sub_f32 v{b}, v{b}, v{vMean}")
        k(f"v_cvt_pk_bf16_f32 v{vTmp}, v{a}, v{b}")
        k(f"v_lshlrev_b32 v{a}, 16, v{vTmp}")
        k(f"v_and_b32 v{b}, 0xffff0000, v{vTmp}")
        k(f"v_mul_f32 v{a}, v{a}, v{vS}")
        k(f"v_mul_f32 v{b}, v{b}, v{vS}")
        k(f"v_cvt_pk_bf16_f32 v{vW+i}, v{a}, v{b}")
        k(f"buffer_store_dword v{vW+i}, v4, s[12:15], 0 offen offset:{256*i}")
    k.lab(end)
    k("s_endpgm")
    return k, dict(vgprs=vX + n + 2, sgprs=32, lds=0, grid=NWG)

import struct
def hex_f32(x):
    return "0x%08x" % struct.unpack("<I", struct.pack("<f", x))[0]
```

```python
import sys
sys.path.insert(0, "gen")
from asmlib import *
from gemm import gen_gemm
from lnk import gen_ln
from attn import gen_kv, gen_attn
from build import write_s

S, D, F, FH = 2048, 640, 1536, 768
WS_X    = 0x0000000
WS_XN   = 0x0280000
WS_QKV  = 0x0500000
WS_O    = 0x0C80000
WS_Z    = 0x0F00000
WS_Z2N  = 0x1500000
WS_ZZ   = 0x1800000
WS_KVP  = 0x1B00000
XB = S * D * 2
b_Ax   = Buf('A_x', 0, XB)
b_X    = Buf('ws', WS_X, XB)
b_XN   = Buf('ws', WS_XN, XB)
b_QKV  = Buf('ws', WS_QKV, S * 3 * D * 2)
b_O    = Buf('ws', WS_O, XB)
b_Z    = Buf('ws', WS_Z, S * F * 2)
b_Z2N  = Buf('ws', WS_Z2N, S * FH * 2)
b_ZZ   = Buf('ws', WS_ZZ, S * FH * 2)
b_KVP  = Buf('ws', WS_KVP, 32 * 32 * 48 * 32 * 4)
b_OUT  = Buf('out', 0, XB)
b_wqkv = Buf('A_wqkv', 0, D * 3 * D * 2)
b_phi  = Buf('A_w_phi', 0, 32 * 20 * 20 * 2)
b_wo   = Buf('A_wo', 0, D * D * 2)
b_win  = Buf('B_w_in', 0, D * F * 2)
b_wsp  = Buf('B_w_sp', 0, S * S * 2)
b_bsp  = Buf('B_b_sp', 0, S * 2)
b_wout = Buf('B_w_out', 0, FH * D * 2)

K = {}
K['lnin_kernel'] = gen_ln('lnin_kernel', S, D, b_Ax, D*2, 0, b_XN, D*2)
K['lnws_kernel'] = gen_ln('lnws_kernel', S, D, b_X, D*2, 0, b_XN, D*2)
K['qkv_kernel'] = gen_gemm('qkv_kernel', S, 3*D, D, 128, 128, b_XN, D*2, b_wqkv, 3*D*2, b_QKV, 3*D*2)
K['kv_kernel'] = gen_kv('kv_kernel', b_QKV, b_phi, b_KVP)
K['attn_kernel'] = gen_attn('attn_kernel', b_QKV, b_phi, b_KVP, b_O)
K['wofirst_kernel'] = gen_gemm('wofirst_kernel', S, D, D, 64, 128, b_O, D*2, b_wo, D*2, b_X, D*2, epi="resid", extra=dict(X=b_Ax))
K['wo_kernel'] = gen_gemm('wo_kernel', S, D, D, 64, 128, b_O, D*2, b_wo, D*2, b_X, D*2, epi="resid", extra=dict(X=b_X))
K['win_kernel'] = gen_gemm('win_kernel', S, F, D, 128, 128, b_XN, D*2, b_win, F*2, b_Z, F*2, epi="gelu")
K['lnz_kernel'] = gen_ln('lnz_kernel', S, FH, b_Z, F*2, FH*2, b_Z2N, FH*2)
K['sp_kernel'] = gen_gemm('sp_kernel', S, FH, S, 64, 128, b_wsp, S*2, b_Z2N, FH*2, b_ZZ, FH*2, epi="spatial",
                          extra=dict(Z1=b_Z, ldz=F*2, BIAS=b_bsp))
K['wout_kernel'] = gen_gemm('wout_kernel', S, D, FH, 64, 128, b_ZZ, FH*2, b_wout, D*2, b_X, D*2, epi="resid", extra=dict(X=b_X))
K['woutfin_kernel'] = gen_gemm('woutfin_kernel', S, D, FH, 64, 128, b_ZZ, FH*2, b_wout, D*2, b_OUT, D*2, epi="resid", extra=dict(X=b_X))

order = ['lnin_kernel','qkv_kernel','kv_kernel','attn_kernel','wofirst_kernel',
         'lnws_kernel','win_kernel','lnz_kernel','sp_kernel','wout_kernel',
         'lnws_kernel','qkv_kernel','kv_kernel','attn_kernel','wo_kernel',
         'lnws_kernel','win_kernel','lnz_kernel','sp_kernel','woutfin_kernel']
out = sys.argv[1] if len(sys.argv) > 1 else "v1.s"
write_s(out, K, order)
for n, (k, info) in K.items():
    print(n, info)
```
